```python
import torch

def _softmax(x, axis=-1):
    return torch.softmax(x, dim=axis)
def _gelu(x):
    return torch.nn.functional.gelu(x, approximate="tanh")
def _silu(x):
    return torch.nn.functional.silu(x)
def _sigmoid(x):
    return torch.sigmoid(x)
def _layernorm(x, axis=-1, eps=1e-5):
    m = x.mean(dim=axis, keepdim=True)
    v = x.var(dim=axis, keepdim=True, unbiased=False)
    return (x - m) / torch.sqrt(v + eps)
def _scatter_add(tgt, idx, src, axis=0):
    return tgt.clone().index_add_(axis, idx, src)
def _segment_sum(src, seg, n):
    out = torch.zeros((n,) + src.shape[1:], dtype=src.dtype)
    return out.index_add_(0, seg, src)
def _pad(x, pw):
    flat = tuple(v for pair in reversed(pw) for v in pair)
    return torch.nn.functional.pad(x, flat)

kernel_name = 'standalone__grn__sampling'

def setup_inputs():

    _w = (lambda a: (lambda t: t.to(torch.bfloat16) if t.is_floating_point() else t)(torch.as_tensor(a)))
    B, S, D = 1024, 32, 576
    return {
        "x": _w((lambda *s: torch.randn(*s, dtype=torch.bfloat16) * 0.05)(B, S, D)),
        "g": _w((lambda *s: torch.randn(*s, dtype=torch.bfloat16) * 0.4)(D) * 0.1),
        "b": _w((lambda *s: torch.randn(*s, dtype=torch.bfloat16) * 0.1)(D) * 0.1),
    }

def reference(x, g, b):
    gx = torch.sqrt((x * x).sum(axis=-2, keepdims=True))
    nx = gx / (gx.mean(axis=-1, keepdims=True) + 1e-6)
    return g * (x * nx) + b + x
```

```python
HEADER = """; Kernarg layout for this problem (48 bytes, ptrs only, base s[0:1]):
"""
def gen(ldflags="", stflags="sc0 sc1", name="standalone__grn__sampling_kernel", tl=0, prio=3, prio_drop="issue",
        skew=0, computefirst=0, stprio=0, stwin=-1, touch=0, evenwin=-1, altfrom=-1, altflags="", nvdecl=None, spin=0, oddearly=0, allearly=0, bmap="", evenlate=0, clk=0):
    W = 4; R = 8
    L = []; A = L.append
    vOffM, vOffR, vW, vL, vX = 1, 2, 3, 4, 5
    T0 = 6
    ACCM = 14
    ACCR = 22
    GM, BM, BR, GR = 30, 34, 38, 42
    RD = 44
    SCM, SCR = 44, 52
    DM = 60
    DR = 92
    NV = 96
    BFM, BFR = ACCM, ACCR
    LDS_PARTR = W * 2048
    LDS_SC = W * 2048 + 1024
    lds_bytes = LDS_SC + 256 * W
    ne = 128 + skew; no = 128 - skew
    grid = 8 * ne if skew else 1024
    A(HEADER + f"; @launch grid=({grid},1,1) block=(256,1,1) lds={lds_bytes}")
    A('.amdgcn_target "amdgcn-amd-amdhsa--gfx950"')
    A(".text"); A(f".globl {name}"); A(".p2align 8"); A(f".type {name},@function"); A(f"{name}:")
    if tl: A("  s_memrealtime s[64:65]")
    if clk:
        A("  s_memtime s[40:41]")
        A("  s_memrealtime s[42:43]")
    if prio: A(f"  s_setprio {prio}")
    A("  s_load_dwordx2 s[4:5], s[0:1], 0        ; x")
    A("  s_load_dwordx2 s[8:9], s[0:1], 8        ; g")
    A("  s_load_dwordx2 s[12:13], s[0:1], 16     ; b")
    A("  s_load_dwordx2 s[16:17], s[0:1], 24     ; out")
    if skew:
        A("  s_lshr_b32 s20, s2, 3               ; j")
        A("  s_and_b32 s21, s2, 7                ; x")
        A("  s_lshr_b32 s22, s21, 1              ; pair")
        A("  s_lshl_b32 s23, s20, 2")
        A("  s_add_u32 s23, s23, s22             ; j*4 + pair")
        A("  s_bitcmp1_b32 s2, 0")
        A(f"  s_movk_i32 s24, {ne}")
        A(f"  s_cselect_b32 s24, {no}, s24")
        A(f"  s_cselect_b32 s25, {4*ne}, 0         ; base")
        A("  s_cmp_ge_u32 s20, s24")
        A("  s_cbranch_scc1 L_end")
        A("  s_add_u32 s23, s23, s25             ; batch")
    else:
        A("  s_cmp_ge_u32 s2, 1024")
        A("  s_cbranch_scc1 L_end")
        if bmap == "x1":
            A("  s_xor_b32 s23, s2, 1")
        elif bmap == "blk":
            A("  s_and_b32 s23, s2, 7")
            A("  s_lshl_b32 s23, s23, 7")
            A("  s_lshr_b32 s24, s2, 3")
            A("  s_add_u32 s23, s23, s24")
        elif bmap == "rot":
            A("  s_lshr_b32 s24, s2, 3")
            A("  s_add_u32 s24, s24, s2")
            A("  s_and_b32 s24, s24, 7")
            A("  s_and_b32 s23, s2, 0xfffffff8")
            A("  s_or_b32 s23, s23, s24")
        elif bmap == "cu":
            A("  s_and_b32 s23, s2, 255")
            A("  s_lshl_b32 s23, s23, 2")
            A("  s_lshr_b32 s24, s2, 8")
            A("  s_add_u32 s23, s23, s24")
        else:
            A("  s_mov_b32 s23, s2")
    A("  s_mul_i32 s23, s23, 36864")
    A(f"  v_and_b32 v{vL}, 63, v0")
    A(f"  v_lshrrev_b32 v{vW}, 6, v0")
    A(f"  v_mul_u32_u24 v6, {R*1152}, v{vW}")
    A(f"  v_add_u32 v6, s23, v6")
    A(f"  v_lshl_add_u32 v{vOffM}, v{vL}, 4, v6")
    A(f"  v_lshrrev_b32 v7, 3, v{vL}")
    A(f"  v_mul_u32_u24 v8, 1152, v7")
    A(f"  v_and_b32 v{vX}, 7, v{vL}")
    A(f"  v_lshlrev_b32 v{vX}, 4, v{vX}            ; (l&7)*16")
    A(f"  v_add3_u32 v{vOffR}, v8, v6, v{vX}")
    A(f"  v_add_u32 v{vOffR}, 1024, v{vOffR}")
    A(f"  v_lshlrev_b32 v9, 4, v{vL}              ; l*16")
    A(f"  v_add_u32 v10, 1024, v{vX}             ; 1024+(l&7)*16")
    A(f"  v_lshl_add_u32 v11, v7, 1, v10         ; + (l>>3)*2")
    A("  s_mov_b32 s6, 37748736")
    A("  s_mov_b32 s7, 0x20000")
    A("  s_mov_b32 s10, 1152")
    A("  s_mov_b32 s11, 0x20000")
    A("  s_mov_b32 s14, 1152")
    A("  s_mov_b32 s15, 0x20000")
    A("  s_mov_b32 s18, 37748736")
    A("  s_mov_b32 s19, 0x20000")
    A("  s_movk_i32 s26, 4608")
    A("  s_mov_b32 s27, 0xffff0000")
    A("  s_waitcnt lgkmcnt(0)")
    if tl: A("  s_memrealtime s[66:67]")
    so = lambda r: "0" if r < 4 else "s26"
    if evenlate:
        A("  s_getreg_b32 s29, hwreg(HW_REG_XCC_ID)")
        A("  s_bitcmp1_b32 s29, 0")
        A("  s_cbranch_scc1 L_go")
        for q in range(evenlate):
            A(f"  buffer_load_dword v43, v9, s[8:11], 0 offen")
            A("  s_waitcnt vmcnt(0)")
        A("L_go:")
    for r in range(R):
        A(f"  buffer_load_dwordx4 v[{DM+4*r}:{DM+4*r+3}], v{vOffM}, s[4:7], {so(r)} offen offset:{(r%4)*1152} {ldflags}")
    A(f"  buffer_load_dwordx4 v[{DR}:{DR+3}], v{vOffR}, s[4:7], 0 offen {ldflags}")
    A(f"  buffer_load_dwordx4 v[{GM}:{GM+3}], v9, s[8:11], 0 offen")
    A(f"  buffer_load_ushort v{GR}, v11, s[8:11], 0 offen")
    A(f"  buffer_load_dwordx4 v[{BM}:{BM+3}], v9, s[12:15], 0 offen")
    A(f"  buffer_load_dwordx4 v[{BR}:{BR+3}], v10, s[12:15], 0 offen")
    ntouch = 0
    if touch:
        A("  s_mov_b64 exec, 1")
        A(f"  buffer_load_dword v43, v{vOffM}, s[16:19], 0 offen nt")
        A("  s_mov_b64 exec, -1")
        ntouch = 1
    if prio and prio_drop == "issue": A(f"  s_setprio {stprio}")
    total = R + 1 + 4 + ntouch
    tp = [0]
    def sq(acc, src, first):
        t = T0 + 2 * (tp[0] % 4); tp[0] += 1
        A(f"  v_lshlrev_b32 v{t}, 16, v{src}")
        A(f"  v_and_b32 v{t+1}, s27, v{src}")
        if first: A(f"  v_pk_mul_f32 v[{acc}:{acc+1}], v[{t}:{t+1}], v[{t}:{t+1}]")
        else:     A(f"  v_pk_fma_f32 v[{acc}:{acc+1}], v[{t}:{t+1}], v[{t}:{t+1}], v[{acc}:{acc+1}]")
    for r in range(R):
        A(f"  s_waitcnt vmcnt({total - 1 - r})")
        if tl and r == 0: A("  s_memrealtime s[68:69]")
        for j in range(4): sq(ACCM + 2*j, DM + 4*r + j, r == 0)
    A(f"  s_waitcnt vmcnt({total - 1 - R})")
    for j in range(4): sq(ACCR + 2*j, DR + j, True)
    if tl: A("  s_memrealtime s[70:71]")
    A(f"  v_lshlrev_b32 v6, 11, v{vW}             ; w*2048")
    A(f"  v_lshl_add_u32 v6, v{vL}, 4, v6        ; + l*16")
    A(f"  ds_write_b128 v6, v[{ACCM}:{ACCM+3}]")
    A(f"  ds_write_b128 v6, v[{ACCM+4}:{ACCM+7}] offset:1024")
    for j in range(4): A(f"  v_permlane32_swap_b32 v{ACCR+j}, v{ACCR+j+4}")
    for j in range(4): A(f"  v_add_f32 v{ACCR+j}, v{ACCR+j}, v{ACCR+j+4}")
    A(f"  v_lshlrev_b32 v7, 2, v{vW}")
    A(f"  v_lshl_add_u32 v7, v{vL}, 4, v7        ; l*16 + w*4")
    for j in range(2): A(f"  v_permlane16_swap_b32 v{ACCR+j}, v{ACCR+j+2}")
    for j in range(2): A(f"  v_add_f32 v{ACCR+j}, v{ACCR+j}, v{ACCR+j+2}")
    A(f"  v_lshlrev_b32 v6, 4, v{vL}")
    A("  s_nop 0")
    SR = ACCR + 2
    A(f"  v_add_f32_dpp v{SR}, v{ACCR}, v{ACCR} row_ror:8 row_mask:0xf bank_mask:0x3")
    A(f"  v_add_f32_dpp v{SR}, v{ACCR+1}, v{ACCR+1} row_ror:8 row_mask:0xf bank_mask:0xc")
    A(f"  ds_write_b32 v7, v{SR} offset:{LDS_PARTR}")
    A("  s_waitcnt lgkmcnt(0)")
    A("  s_barrier")
    if tl: A("  s_memrealtime s[72:73]")
    for w in range(2):
        A(f"  ds_read_b128 v[{RD+8*w}:{RD+8*w+3}], v6 offset:{w*2048}")
        A(f"  ds_read_b128 v[{RD+8*w+4}:{RD+8*w+7}], v6 offset:{w*2048+1024}")
    A(f"  ds_read_b128 v[8:11], v6 offset:{LDS_PARTR}")
    A(f"  ds_read_b128 v[{ACCR+4}:{ACCR+7}], v6 offset:{2*2048}")
    A("  s_waitcnt lgkmcnt(2)")
    for j in range(0, 8, 2):
        A(f"  v_pk_add_f32 v[{ACCM+j}:{ACCM+j+1}], v[{RD+j}:{RD+j+1}], v[{RD+8+j}:{RD+8+j+1}]")
    A(f"  ds_read_b128 v[{RD}:{RD+3}], v6 offset:{2*2048+1024}")
    A(f"  ds_read_b128 v[{RD+4}:{RD+7}], v6 offset:{3*2048}")
    A(f"  ds_read_b128 v[{RD+8}:{RD+11}], v6 offset:{3*2048+1024}")
    A("  s_waitcnt lgkmcnt(4)")
    A(f"  v_add_f32 v8, v8, v9")
    A(f"  v_add_f32 v10, v10, v11")
    A(f"  v_add_f32 v{SR}, v8, v10")
    A("  s_waitcnt lgkmcnt(1)")
    A(f"  v_pk_add_f32 v[{ACCR+4}:{ACCR+5}], v[{ACCR+4}:{ACCR+5}], v[{RD+4}:{RD+5}]")
    A(f"  v_pk_add_f32 v[{ACCR+6}:{ACCR+7}], v[{ACCR+6}:{ACCR+7}], v[{RD+6}:{RD+7}]")
    A(f"  v_pk_add_f32 v[{ACCM}:{ACCM+1}], v[{ACCM}:{ACCM+1}], v[{ACCR+4}:{ACCR+5}]")
    A(f"  v_pk_add_f32 v[{ACCM+2}:{ACCM+3}], v[{ACCM+2}:{ACCM+3}], v[{ACCR+6}:{ACCR+7}]")
    A("  s_waitcnt lgkmcnt(0)")
    A(f"  v_pk_add_f32 v[{RD}:{RD+1}], v[{RD}:{RD+1}], v[{RD+8}:{RD+9}]")
    A(f"  v_pk_add_f32 v[{RD+2}:{RD+3}], v[{RD+2}:{RD+3}], v[{RD+10}:{RD+11}]")
    A(f"  v_pk_add_f32 v[{ACCM+4}:{ACCM+5}], v[{ACCM+4}:{ACCM+5}], v[{RD}:{RD+1}]")
    A(f"  v_pk_add_f32 v[{ACCM+6}:{ACCM+7}], v[{ACCM+6}:{ACCM+7}], v[{RD+2}:{RD+3}]")
    A(f"  v_sqrt_f32 v{SR}, v{SR}")
    for j in range(8): A(f"  v_sqrt_f32 v{ACCM+j}, v{ACCM+j}")
    A("  s_nop 0")
    A(f"  v_add_f32 v6, v{ACCM}, v{ACCM+1}")
    A(f"  v_add_f32 v7, v{ACCM+2}, v{ACCM+3}")
    A(f"  v_add_f32 v8, v{ACCM+4}, v{ACCM+5}")
    A(f"  v_add_f32 v9, v{ACCM+6}, v{ACCM+7}")
    A(f"  v_add_f32 v6, v6, v7")
    A(f"  v_add_f32 v8, v8, v9")
    A(f"  v_add_f32 v6, v6, v{SR}")
    A(f"  v_add_f32 v6, v6, v8")
    A("  s_waitcnt vmcnt(0)")
    fill = []
    for j in range(4):
        fill.append(f"  v_lshlrev_b32 v{SCM+2*j}, 16, v{GM+j}")
        fill.append(f"  v_and_b32 v{SCM+2*j+1}, s27, v{GM+j}")
    fi = 0
    for ror in (8, 4, 2, 1):
        A(fill[fi]); A(fill[fi+1]); fi += 2
        A(f"  v_add_f32_dpp v6, v6, v6 row_ror:{ror} row_mask:0xf bank_mask:0xf")
    A("  v_mov_b32 v7, v6")
    A(f"  v_lshlrev_b32 v{GR}, 16, v{GR}")
    A(f"  v_and_b32 v8, 7, v{vL}")
    A("  v_permlane16_swap_b32 v6, v7")
    A("  v_add_f32 v6, v6, v7")
    A("  v_mov_b32 v7, v6")
    A(f"  v_lshlrev_b32 v8, 5, v8                ; (l&7)*32")
    A(f"  v_lshl_add_u32 v8, v{vW}, 8, v8        ; + w*256")
    A("  v_permlane32_swap_b32 v6, v7")
    A("  v_add_f32 v6, v6, v7")
    A("  v_mov_b32 v7, 0x358637bd              ; 1e-6")
    A("  s_mov_b32 s28, 0x3ae38e39             ; 1/576")
    A("  v_fma_f32 v6, v6, s28, v7")
    A("  v_rcp_f32 v6, v6")
    A(f"  v_lshrrev_b32 v9, 3, v{vL}")
    A(f"  v_lshl_add_u32 v9, v9, 2, v8")
    A(f"  v_mul_f32 v{SR}, v{SR}, v6")
    A(f"  v_fma_f32 v{SR}, v{GR}, v{SR}, 1.0")
    A(f"  ds_write_b32 v9, v{SR} offset:{LDS_SC}")
    for j in range(8): A(f"  v_mul_f32 v{ACCM+j}, v{ACCM+j}, v6")
    for j in range(8): A(f"  v_fma_f32 v{SCM+j}, v{SCM+j}, v{ACCM+j}, 1.0")
    A("  s_waitcnt lgkmcnt(0)")
    A(f"  ds_read_b128 v[{SCR}:{SCR+3}], v8 offset:{LDS_SC}")
    A(f"  ds_read_b128 v[{SCR+4}:{SCR+7}], v8 offset:{LDS_SC+16}")
    for j in range(4):
        A(f"  v_lshlrev_b32 v{BFM+2*j}, 16, v{BM+j}")
        A(f"  v_and_b32 v{BFM+2*j+1}, s27, v{BM+j}")
    for j in range(4):
        A(f"  v_lshlrev_b32 v{BFR+2*j}, 16, v{BR+j}")
        A(f"  v_and_b32 v{BFR+2*j+1}, s27, v{BR+j}")
    if prio and prio_drop == "late": A(f"  s_setprio {stprio}")
    def outp(src, sc, bb):
        t = T0 + 2 * (tp[0] % 4); tp[0] += 1
        A(f"  v_lshlrev_b32 v{t}, 16, v{src}")
        A(f"  v_and_b32 v{t+1}, s27, v{src}")
        A(f"  v_pk_fma_f32 v[{t}:{t+1}], v[{t}:{t+1}], v[{sc}:{sc+1}], v[{bb}:{bb+1}]")
        A(f"  v_cvt_pk_bf16_f32 v{src}, v{t}, v{t+1}")
    def stM(r): A(f"  buffer_store_dwordx4 v[{DM+4*r}:{DM+4*r+3}], v{vOffM}, s[16:19], {so(r)} offen offset:{(r%4)*1152} {stflags}")
    def stR(): A(f"  buffer_store_dwordx4 v[{DR}:{DR+3}], v{vOffR}, s[16:19], 0 offen {stflags}")
    for r in range(R):
        for j in range(4): outp(DM + 4*r + j, SCM + 2*j, BFM + 2*j)
        if not computefirst: stM(r)
    A("  s_waitcnt lgkmcnt(0)")
    for j in range(4): outp(DR + j, SCR + 2*j, BFR + 2*j)
    if computefirst:
        if prio and prio_drop == "store":
            if oddearly or allearly:
                if oddearly:
                    A("  s_getreg_b32 s29, hwreg(HW_REG_XCC_ID)")
                    A("  s_bitcmp1_b32 s29, 0")
                    A(f"  s_cselect_b32 s29, {oddearly} , {allearly}" if (oddearly <= 64 or allearly <= 64 or oddearly == allearly) else "  ERR")
                else:
                    A(f"  s_movk_i32 s29, {allearly}")
                A("  s_cmp_lt_u32 s2, s29")
                A("  s_cbranch_scc1 L_keep")
            A(f"  s_setprio {stprio}")
            if oddearly or allearly: A("L_keep:")
        if altfrom >= 0:
            A(f"  s_cmp_lt_u32 s2, {altfrom}")
            A("  s_cbranch_scc1 L_fast")
            save = stflags
            for r in range(R):
                A(f"  buffer_store_dwordx4 v[{DM+4*r}:{DM+4*r+3}], v{vOffM}, s[16:19], {so(r)} offen offset:{(r%4)*1152} {altflags}")
            A(f"  buffer_store_dwordx4 v[{DR}:{DR+3}], v{vOffR}, s[16:19], 0 offen {altflags}")
            A("  s_branch L_fin")
            A("L_fast:")
        if evenwin >= 0:
            A("  s_getreg_b32 s29, hwreg(HW_REG_XCC_ID)")
            A("  s_bitcmp1_b32 s29, 0")
            A("  s_cbranch_scc1 L_fast")
            for r in range(R):
                stM(r)
                if r >= evenwin: A(f"  s_waitcnt vmcnt({evenwin})")
            stR()
            A("  s_branch L_fin")
            A("L_fast:")
        for r in range(R):
            stM(r)
            if stwin >= 0 and r >= stwin: A(f"  s_waitcnt vmcnt({stwin})")
    stR()
    if evenwin >= 0 or altfrom >= 0: A("L_fin:")
    if clk:
        A("  s_waitcnt vmcnt(0)")
        A("  s_memtime s[44:45]")
        A("  s_memrealtime s[46:47]")
        A("  s_load_dwordx2 s[48:49], s[0:1], 32")
        A("  s_waitcnt lgkmcnt(0)")
        A("  s_and_b32 s50, s2, 255")
        A("  s_cmp_lg_u32 s50, 0")
        A("  s_cbranch_scc1 L_end")
        A("  s_sub_u32 s44, s44, s40")
        A("  s_sub_u32 s46, s46, s42")
        A("  s_lshr_b32 s50, s2, 8")
        A("  s_lshl_b32 s50, s50, 3")
        A("  v_mov_b32 v6, s44")
        A("  v_mov_b32 v7, s46")
        A("  v_mov_b32 v8, s50")
        A("  v_cmp_eq_u32 vcc, 0, v0")
        A("  s_and_saveexec_b64 s[52:53], vcc")
        A("  s_cbranch_execz L_end")
        A("  global_store_dwordx2 v8, v[6:7], s[48:49]")
    if tl:
        A("  s_memrealtime s[74:75]")
        A("  s_waitcnt vmcnt(0)")
        A("  s_memrealtime s[76:77]")
        A("  s_load_dwordx2 s[60:61], s[0:1], 40")
        A("  s_getreg_b32 s78, hwreg(HW_REG_HW_ID)")
        A("  s_getreg_b32 s79, hwreg(HW_REG_XCC_ID)")
        A("  s_waitcnt lgkmcnt(0)")
        for i in range(16): A(f"  v_mov_b32 v{16+i}, s{64+i}")
        A(f"  v_readfirstlane_b32 s62, v0")
        A(f"  s_lshr_b32 s62, s62, 6")
        A(f"  s_mul_i32 s63, s2, {W}")
        A(f"  s_add_u32 s62, s62, s63")
        A(f"  s_lshl_b32 s62, s62, 6")
        A("  v_mov_b32 v10, s62")
        A("  v_and_b32 v11, 63, v0")
        A("  v_cmp_eq_u32 vcc, 0, v11")
        A("  s_and_saveexec_b64 s[62:63], vcc")
        A("  s_cbranch_execz L_end")
        for i in range(4): A(f"  global_store_dwordx4 v10, v[{16+4*i}:{16+4*i+3}], s[60:61] offset:{16*i}")
    A("L_end:"); A("  s_endpgm")
    A('.section .rodata,"a"'); A(".p2align 6"); A(f".amdhsa_kernel {name}")
    NVD = nvdecl or NV
    A(f"  .amdhsa_next_free_vgpr {NVD}")
    A(f"  .amdhsa_next_free_sgpr {88 if (tl or clk) else 32}")
    A(f"  .amdhsa_accum_offset {NVD}")
    A("  .amdhsa_group_segment_fixed_size 0"); A("  .amdhsa_kernarg_size 48"); A("  .amdhsa_user_sgpr_count 2")
    A("  .amdhsa_user_sgpr_kernarg_segment_ptr 1"); A("  .amdhsa_system_sgpr_workgroup_id_x 1")
    A("  .amdhsa_float_denorm_mode_32 3")
    A(".end_amdhsa_kernel")
    return "\n".join(L) + "\n"

if __name__ == "__main__":
    import argparse
    p = argparse.ArgumentParser()
    p.add_argument("--ld", default=""); p.add_argument("--st", default="sc0 sc1")
    p.add_argument("--tl", type=int, default=0); p.add_argument("--prio", type=int, default=3)
    p.add_argument("--drop", default="issue"); p.add_argument("--skew", type=int, default=0)
    p.add_argument("--cf", type=int, default=0); p.add_argument("--stwin", type=int, default=-1); p.add_argument("--touch", type=int, default=0); p.add_argument("--evenwin", type=int, default=-1); p.add_argument("--altfrom", type=int, default=-1); p.add_argument("--altflags", default=""); p.add_argument("--nv", type=int, default=None); p.add_argument("--oddearly", type=int, default=0); p.add_argument("--allearly", type=int, default=0); p.add_argument("--bmap", default=""); p.add_argument("--evenlate", type=int, default=0); p.add_argument("--clk", type=int, default=0); p.add_argument("--stprio", type=int, default=0)
    p.add_argument("-o", default="standalone__grn__sampling.s")
    a = p.parse_args()
    open(a.o, "w").write(gen(a.ld, a.st, tl=a.tl, prio=a.prio, prio_drop=a.drop, skew=a.skew, computefirst=a.cf, stprio=a.stprio, stwin=a.stwin, touch=a.touch, evenwin=a.evenwin, altfrom=a.altfrom, altflags=a.altflags, nvdecl=a.nv, oddearly=a.oddearly, allearly=a.allearly, bmap=a.bmap, evenlate=a.evenlate, clk=a.clk))
```

```python
import gen2
src = gen2.gen("nt", "sc0 sc1", prio=3, prio_drop="store", computefirst=1, nvdecl=104)
lines = src.split("\n")
out = []
DOC = """; GRN (ConvNeXt-V2 global response normalisation), one workgroup (4 waves) per batch element.
; memory system sees a read phase followed by a write phase instead of a slower read/write mix."""
for ln in lines:
    if ln.startswith("; @launch"):
        out.append(ln); out.append(DOC); continue
    out.append(ln)
txt = "\n".join(out)
def before(pat, comment, count=1):
    global txt
    i = txt.find(pat)
    assert i >= 0, pat
    txt = txt[:i] + "  ; ---- " + comment + "\n" + txt[i:]
before("  s_load_dwordx2 s[4:5], s[0:1], 0", "kernel arguments, bounds guard, per-lane byte offsets (v1 main, v2 rem, v9/v10/v11 for g and b), descriptors")
before("  buffer_load_dwordx4 v[60:63]", "loads: 8 main rows -> v60..91, rem -> v92..95, then g (v30..33, v42) and b (v34..41)")
before("  s_waitcnt vmcnt(12)", "pass 1: per-column sums of squares over this wave's rows (main v14..21, rem v22..29)")
before("  v_lshlrev_b32 v6, 11, v3", "publish main partial sums; reduce-scatter the rem sums so that lane l holds column 512+8(l&7)+(l>>3)")
before("  ds_read_b128 v[44:47], v6\n" if "  ds_read_b128 v[44:47], v6\n" in txt else "  ds_read_b128 v[44:47], v6 offset:0", "sum the four waves' partials (every wave does this redundantly: one barrier only)")
before("  v_sqrt_f32 v24, v24", "gx = sqrt(sum), wave-wide sum of gx over all 576 columns, inv = 1/(mean + 1e-6), scale = 1 + g*gx*inv")
before("  v_lshlrev_b32 v6, 16, v60" if False else "  ds_read_b128 v[52:55], v8", "rem scales back to the load layout through LDS; unpack b")
i = txt.find("  ds_read_b128 v[56:59], v8")
j = txt.find("  v_pk_fma_f32", i)
k = txt.rfind("  v_lshlrev_b32", i, j)
txt = txt[:k] + "  ; ---- pass 2: out = x*scale + b, rounded to bf16 in place\n" + txt[k:]
before("  s_setprio 0", "results are ready: drop priority and store (write-through)")
open("standalone__grn__sampling.s", "w").write(txt)
```
